```python
import torch

def _softmax(x, axis=-1):
    return torch.softmax(x, dim=axis)
def _gelu(x):
    return torch.nn.functional.gelu(x, approximate="tanh")
def _silu(x):
    return torch.nn.functional.silu(x)
def _sigmoid(x):
    return torch.sigmoid(x)
def _layernorm(x, axis=-1, eps=1e-5):
    m = x.mean(dim=axis, keepdim=True)
    v = x.var(dim=axis, keepdim=True, unbiased=False)
    return (x - m) / torch.sqrt(v + eps)
def _scatter_add(tgt, idx, src, axis=0):
    return tgt.clone().index_add_(axis, idx, src)
def _segment_sum(src, seg, n):
    out = torch.zeros((n,) + src.shape[1:], dtype=src.dtype)
    return out.index_add_(0, seg, src)
def _pad(x, pw):
    flat = tuple(v for pair in reversed(pw) for v in pair)
    return torch.nn.functional.pad(x, flat)

kernel_name = 'gated_mix__ssm_conv_s5__dense_activation_silu__prompt'

def setup_inputs():

    _w = (lambda a: (lambda t: t.to(torch.bfloat16) if t.is_floating_point() else t)(torch.as_tensor(a)))
    def _A_setup():
        B, S, D = 1, 2048, 512
        P = D
        Lambda_re = -0.5 * (lambda _x: torch.exp(torch.as_tensor(_x)))((lambda *s: torch.randn(*s, dtype=torch.bfloat16) * 0.2)(P))
        Lambda_im = (lambda *s: torch.randn(*s, dtype=torch.bfloat16) * 0.4)(P) * 1.0
        B_re = (lambda *s: torch.randn(*s, dtype=torch.bfloat16) * 0.2)(P, D) * (D ** -0.5)
        B_im = (lambda *s: torch.randn(*s, dtype=torch.bfloat16) * 0.2)(P, D) * (D ** -0.5)
        C_re = (lambda *s: torch.randn(*s, dtype=torch.bfloat16) * 0.2)(D, P) * (P ** -0.5)
        C_im = (lambda *s: torch.randn(*s, dtype=torch.bfloat16) * 0.2)(D, P) * (P ** -0.5)
        log_dt = (lambda *s: torch.randn(*s, dtype=torch.bfloat16) * 0.2)(P) * 0.3 - 2.0
        Dskip = (lambda *s: torch.randn(*s, dtype=torch.bfloat16) * 0.05)(D)
        return {
            "x": _w((lambda *s: torch.randn(*s, dtype=torch.bfloat16) * 0.05)(B, S, D)),
            "Lambda_re": _w(Lambda_re),
            "Lambda_im": _w(Lambda_im),
            "B_re": _w(B_re),
            "B_im": _w(B_im),
            "C_re": _w(C_re),
            "C_im": _w(C_im),
            "log_dt": _w(log_dt),
            "Dskip": _w(Dskip),
        }
    _A_in = _A_setup()

    def _B_setup():
        B, S, D, F = 1, 2048, 512, 1792
        return {
            "x": _w((lambda *s: torch.randn(*s, dtype=torch.bfloat16) * 0.05)(B, S, D)),
            "w1": _w((lambda *s: torch.randn(*s, dtype=torch.bfloat16) * 3.2)(D, F) * (D ** -0.5)),
            "w2": _w((lambda *s: torch.randn(*s, dtype=torch.bfloat16) * 0.1)(F, D) * (F ** -0.5)),
        }
    _B_in = _B_setup()

    return {
        "A_x": _A_in["x"],
        "A_Lambda_re": _A_in["Lambda_re"],
        "A_Lambda_im": _A_in["Lambda_im"],
        "A_B_re": _A_in["B_re"],
        "A_B_im": _A_in["B_im"],
        "A_C_re": _A_in["C_re"],
        "A_C_im": _A_in["C_im"],
        "A_log_dt": _A_in["log_dt"],
        "A_Dskip": _A_in["Dskip"],
        "B_x": _B_in["x"],
        "B_w1": _B_in["w1"],
        "B_w2": _B_in["w2"],
        "gate_w": _w((lambda *s: torch.randn(*s, dtype=torch.bfloat16) * 0.05)(512) * 16.0),
    }

def reference(A_x, A_Lambda_re, A_Lambda_im, A_B_re, A_B_im, A_C_re, A_C_im, A_log_dt, A_Dskip, B_x, B_w1, B_w2, gate_w):
    def _A_ref(x, Lambda_re, Lambda_im, B_re, B_im, C_re, C_im, log_dt, Dskip):
        Bsz, L, H = x.shape
        Lam = Lambda_re + 1j * Lambda_im
        Bmat = B_re + 1j * B_im
        Cmat = C_re + 1j * C_im
        dt = torch.exp(log_dt)
        Lam_bar = torch.exp(dt * Lam)
        B_bar = ((Lam_bar - 1.0) / Lam)[:, None] * Bmat
        Bu = torch.einsum("bld,pd->blp", x + 0j, B_bar)
        h = torch.zeros_like(Bu[:, 0, :])
        hs = []
        for t in range(L):
            h = Lam_bar[None, :] * h + Bu[:, t, :]
            hs.append(h)
        hseq = torch.stack(hs, 1)
        y = 2.0 * torch.einsum("blp,dp->bld", hseq, Cmat).real + x * Dskip[None, None, :]
        return y

    def _B_ref(x, w1, w2):
        h = torch.einsum("bsd,df->bsf", x, w1)
        h = _silu(h)
        out = torch.einsum("bsf,fd->bsd", h, w2)
        return out

    x = A_x
    g = _sigmoid((x * gate_w).sum(-1, keepdims=True))
    a = _A_ref(x, A_Lambda_re, A_Lambda_im, A_B_re, A_B_im, A_C_re, A_C_im, A_log_dt, A_Dskip)
    b = _B_ref(x, B_w1, B_w2)
    return g * a + (1 - g) * b
```

```python
class Asm:
    def __init__(self):
        self.L = []
        self._lab = 0
    def e(self, s):
        self.L.append("    " + s)
    def c(self, s):
        self.L.append("    ; " + s)
    def label(self, name):
        self.L.append(name + ":")
    def newlabel(self, prefix="L"):
        self._lab += 1
        return f"{prefix}_{self._lab}"
    def raw(self, s):
        self.L.append(s)
    def text(self):
        return "\n".join(self.L) + "\n"

def vr(base, n=1):
    return f"v{base}" if n == 1 else f"v[{base}:{base+n-1}]"
def ar(base, n=1):
    return f"a{base}" if n == 1 else f"a[{base}:{base+n-1}]"
def sr(base, n=1):
    return f"s{base}" if n == 1 else f"s[{base}:{base+n-1}]"

class VM:
    def __init__(self, asm):
        self.a = asm
        self.ops = []
        self.done = 0
    def issue(self, tag, n=1):
        for _ in range(n):
            self.ops.append(tag)
    def wait(self, *tags, extra=""):
        last = -1
        for i, t in enumerate(self.ops):
            if t in tags:
                last = i
        assert last >= 0, f"no op tagged {tags}"
        n_after = len(self.ops) - 1 - last
        assert n_after <= 63, n_after
        if last + 1 <= self.done:
            if extra: self.a.e(f"s_waitcnt {extra}")
            return
        self.done = last + 1
        self.a.e(f"s_waitcnt vmcnt({n_after}) {extra}".rstrip())
    def wait_all(self, extra=""):
        self.done = len(self.ops)
        self.a.e(f"s_waitcnt vmcnt(0) {extra}".rstrip())
    def clone(self, asm=None):
        v = VM(asm or self.a)
        v.ops = list(self.ops); v.done = self.done
        return v

def kernel_header(a, name):
    a.raw(".text")
    a.raw(f".globl {name}")
    a.raw(".p2align 8")
    a.raw(f".type {name},@function")
    a.raw(f"{name}:")

def kernel_desc(a, name, nvgpr_total, accum_offset, nsgpr=102):
    a.raw('.section .rodata,"a"')
    a.raw(".p2align 6")
    a.raw(f".amdhsa_kernel {name}")
    a.raw(f"  .amdhsa_next_free_vgpr {nvgpr_total}")
    a.raw(f"  .amdhsa_next_free_sgpr {nsgpr}")
    a.raw(f"  .amdhsa_accum_offset {accum_offset}")
    a.raw("  .amdhsa_group_segment_fixed_size 0")
    a.raw("  .amdhsa_kernarg_size 128")
    a.raw("  .amdhsa_user_sgpr_count 2")
    a.raw("  .amdhsa_user_sgpr_kernarg_segment_ptr 1")
    a.raw("  .amdhsa_system_sgpr_workgroup_id_x 1")
    a.raw("  .amdhsa_float_denorm_mode_32 3")
    a.raw("  .amdhsa_float_denorm_mode_16_64 3")
    a.raw(".end_amdhsa_kernel")

def srd(a, dst, ptr, nbytes, add_lo=None):
    if add_lo is None:
        a.e(f"s_mov_b32 s{dst}, s{ptr}")
        a.e(f"s_and_b32 s{dst+1}, s{ptr+1}, 0xffff")
    else:
        a.e(f"s_add_u32 s{dst}, s{ptr}, {add_lo}")
        a.e(f"s_addc_u32 s{dst+1}, s{ptr+1}, 0")
        a.e(f"s_and_b32 s{dst+1}, s{dst+1}, 0xffff")
    a.e(f"s_mov_b32 s{dst+2}, {nbytes}")
    a.e(f"s_mov_b32 s{dst+3}, 0x20000")
```

```python
from asmlib import *
from k2 import ACT_OFF, TILE, WF_OFF, G_OFF, E_OFF, WS_USED

LOG2E = "0x3fb8aa3b"
NLOG2E = "0xbfb8aa3b"
INV2PI = "0x3e22f983"

L_X = [0, 48*1024, 96*1024, 0]
L_B = [32*1024, 80*1024, 128*1024, 32*1024]
L_P0 = [144*1024, 48*1024, 64*1024, 80*1024]
L_P1 = [96*1024, 112*1024, 0, 16*1024]
L_Q0 = 96*1024
L_Q1 = 0
L_E = 128*1024
L_H = 132*1024

S_W, S_RG, S_C, S_PG, S_F0B, S_TYPE = 3, 4, 5, 6, 7, 8
S_SOFX, S_SOFB, S_SOFP, S_U = 10, 11, 12, 13
S_TA, S_TB = 14, 15
SRD_X, SRD_B, SRD_W1, SRD_WS, SRD_E, SRD_W2, SRD_C, SRD_DBG = 44, 48, 52, 56, 60, 64, 68, 72
S_T0, S_T1, S_T2, S_T3 = 76, 77, 78, 79
S_SPIN = 81
SPIN_MAX = 300000
S_ACTB = 80
V_LANE = 0
V_OX = [1, 2, 3, 4]; V_OB = [5, 6]; V_OP = 7
V_RX, V_RB, V_T0, V_T1 = 8, 9, 10, 11
V_A0, V_A1 = 12, 13
V_L16 = 14
V_XB = 15
V_BB = 127
ACC0, ACC1, ACC2 = 16, 32, 48
RING = 64
V_LR, V_LI, V_CR, V_CI = 96, 97, 98, 99
V_16R, V_16I, V_128R, V_128I, V_256R, V_256I, V_PWR, V_PWI = 100, 101, 102, 103, 104, 105, 106, 107
V_PR, V_PI = 108, 109
V_ER, V_EI = 110, 111
V_NONCE = 112
VT = 113

class K1:
    def __init__(self, name, stamp=False, prio=True):
        self.a = Asm(); self.name = name; self.stamp = stamp; self.prio = prio
        self.nst = 0
    def e(self, s): self.a.e(s)
    STMAP = {0:0, 1:1, 4:2, 5:3, 6:4, 7:5, 8:6, 9:7, 10:8, 11:9}
    def st(self, idx):
        if self.stamp and idx in self.STMAP:
            k = self.STMAP[idx]
            self.e(f"s_memrealtime s[{82+2*k}:{83+2*k}]")
    def dma_x(self, vm, q):
        e = self.e
        e(f"s_lshl_b32 s{S_T0}, s{S_W}, 12"); e(f"s_add_u32 m0, s{S_T0}, {L_X[q]}")
        e(f"s_add_u32 s{S_T1}, s{S_SOFX}, {q*256}")
        for ii in range(4):
            e(f"buffer_load_dwordx4 v{V_OX[ii]}, s[{SRD_X}:{SRD_X+3}], s{S_T1} offen offset:{1024*ii} lds")
        vm.issue(f"X{q}", 4)
    def dma_b(self, vm, q):
        e = self.e
        e(f"s_lshl_b32 s{S_T0}, s{S_W}, 11"); e(f"s_add_u32 m0, s{S_T0}, {L_B[q]}")
        e(f"s_add_u32 s{S_T1}, s{S_SOFB}, {q*256}")
        for ii in range(2):
            e(f"buffer_load_dwordx4 v{V_OB[ii]}, s[{SRD_B}:{SRD_B+3}], s{S_T1} offen offset:{1024*ii} lds")
        vm.issue(f"B{q}", 2)
    def dma_p(self, vm, pair, q):
        e = self.e
        lds = (L_P0 if pair == 0 else L_P1)[q]
        e(f"s_lshl_b32 s{S_T0}, s{S_W}, 11"); e(f"s_add_u32 m0, s{S_T0}, {lds}")
        e(f"s_add_u32 s{S_T1}, s{S_SOFP}, {q*128*3584 + pair*128}")
        e(f"s_add_u32 s{S_T2}, s{S_T1}, {8*3584-1024}")
        e(f"buffer_load_dwordx4 v{V_OP}, s[{SRD_W1}:{SRD_W1+3}], s{S_T1} offen lds")
        e(f"buffer_load_dwordx4 v{V_OP}, s[{SRD_W1}:{SRD_W1+3}], s{S_T2} offen offset:1024 lds")
        vm.issue(f"P{pair}{q}", 2)
    def dma_q0(self, vm):
        e = self.e
        e(f"s_lshl_b32 s{S_T0}, s{S_W}, 12"); e(f"s_add_u32 m0, s{S_T0}, {L_Q0}")
        e(f"s_lshr_b32 s{S_T1}, s{S_U}, 3"); e(f"s_mul_i32 s{S_T1}, s{S_T1}, {224*1024}")
        e(f"s_and_b32 s{S_T2}, s{S_U}, 7"); e(f"s_lshl_b32 s{S_T2}, s{S_T2}, 7"); e(f"s_add_u32 s{S_T1}, s{S_T1}, s{S_T2}")
        e(f"s_lshl_b32 s{S_T2}, s{S_W}, 15"); e(f"s_add_u32 s{S_T1}, s{S_T1}, s{S_T2}")
        e(f"v_lshrrev_b32 v{V_A0}, 3, v{V_LANE}")
        e(f"v_mul_u32_u24 v{V_A0}, {3584-1024}, v{V_A0}")
        e(f"v_sub_u32 v{V_A0}, v{V_OP}, v{V_A0}")
        for ii in range(4):
            e(f"buffer_load_dwordx4 v{V_A0}, s[{SRD_W2}:{SRD_W2+3}], s{S_T1} offen offset:{1024*ii} lds")
            if ii < 3: e(f"s_add_u32 s{S_T1}, s{S_T1}, {7*1024}")
        vm.issue("P10", 2); vm.issue("P11", 2)
    def dma_q1(self, vm):
        e = self.e
        e(f"s_lshl_b32 s{S_T0}, s{S_W}, 11"); e(f"s_add_u32 m0, s{S_T0}, {L_Q1}")
        e(f"s_lshr_b32 s{S_T1}, s{S_U}, 1"); e(f"s_and_b32 s{S_T1}, s{S_T1}, 15"); e(f"s_lshl_b32 s{S_T1}, s{S_T1}, 15")
        e(f"s_and_b32 s{S_T2}, s{S_U}, 1"); e(f"s_lshl_b32 s{S_T2}, s{S_T2}, 9"); e(f"s_add_u32 s{S_T1}, s{S_T1}, s{S_T2}")
        e(f"s_lshl_b32 s{S_T2}, s{S_W}, 12"); e(f"s_add_u32 s{S_T1}, s{S_T1}, s{S_T2}")
        e(f"v_lshrrev_b32 v{V_A1}, 5, v{V_LANE}")
        e(f"v_and_b32 v{V_A0}, 31, v{V_LANE}")
        e(f"v_xor_b32 v{V_A0}, v{V_A0}, v{V_A1}")
        e(f"s_and_b32 s{S_T2}, s{S_W}, 3"); e(f"s_lshl_b32 s{S_T2}, s{S_T2}, 2")
        e(f"v_xor_b32 v{V_A0}, s{S_T2}, v{V_A0}")
        e(f"v_lshlrev_b32 v{V_A0}, 4, v{V_A0}")
        e(f"v_lshl_add_u32 v{V_A0}, v{V_A1}, 10, v{V_A0}")
        e(f"buffer_load_dwordx4 v{V_A0}, s[{SRD_C}:{SRD_C+3}], s{S_T1} offen lds")
        e(f"v_xor_b32 v{V_A0}, 32, v{V_A0}")
        e(f"v_add_u32 v{V_A0}, 1024, v{V_A0}")
        e(f"buffer_load_dwordx4 v{V_A0}, s[{SRD_C}:{SRD_C+3}], s{S_T1} offen offset:1024 lds")
        vm.issue("P12", 1); vm.issue("P13", 1)

    def xread(self, q, s):
        e = self.e
        if s == 0:
            e(f"v_add_u32 v{V_XB}, {L_X[q]}, v{V_RX}")
            e(f"ds_read_b128 a[{32*q}:{32*q+3}], v{V_XB}")
        else:
            e(f"v_xor_b32 v{V_A0}, {32*s}, v{V_XB}")
            e(f"ds_read_b128 a[{32*q+4*s}:{32*q+4*s+3}], v{V_A0}")
    def round_S(self, q):
        e = self.e
        PD = 2
        def reads(s):
            self.xread(q, s)
            r = RING + ((2*s) % 8)*4; r2 = RING + ((2*s+1) % 8)*4
            if s == 0:
                e(f"v_add_u32 v{V_BB}, {L_B[q]}, v{V_RB}"); ad = V_BB
            else:
                e(f"v_xor_b32 v{V_A1}, {32*s}, v{V_BB}"); ad = V_A1
            e(f"ds_read_b128 v[{r}:{r+3}], v{ad}")
            e(f"ds_read_b128 v[{r2}:{r2+3}], v{ad} offset:8192")
        for s in range(PD): reads(s)
        for s in range(8):
            if s + PD < 8: reads(s+PD)
            out = min(PD, 7-s)*3
            e(f"s_waitcnt lgkmcnt({out})")
            r = RING + ((2*s) % 8)*4; r2 = RING + ((2*s+1) % 8)*4
            xa = f"a[{32*q+4*s}:{32*q+4*s+3}]"
            first = (q == 0 and s == 0)
            e(f"v_mfma_f32_32x32x16_bf16 v[{ACC0}:{ACC0+15}], {xa}, v[{r}:{r+3}], " + ("0" if first else f"v[{ACC0}:{ACC0+15}]"))
            e(f"v_mfma_f32_32x32x16_bf16 v[{ACC1}:{ACC1+15}], {xa}, v[{r2}:{r2+3}], " + ("0" if first else f"v[{ACC1}:{ACC1+15}]"))
    def round_X(self, q):
        for s in range(8): self.xread(q, s)
    def p_tile(self, T):
        e = self.e
        vt = V_T0 if T == 0 else V_T1
        PD = 3
        steps = [(q, s) for q in range(4) for s in range(8)]
        def reads(k):
            q, s = steps[k]
            r = RING + (k % 8)*4
            lds = L_P1[q] + 2048*s
            if lds >= 65536 - 1024:
                va = V_A1 if T else V_A0
                o = lds - 65536
            else:
                va = vt; o = lds
            e(f"ds_read_b64_tr_b16 v[{r}:{r+1}], v{va} offset:{o}")
            e(f"ds_read_b64_tr_b16 v[{r+2}:{r+3}], v{va} offset:{o+512}")
        va = V_A1 if T else V_A0
        e(f"v_add_u32 v{va}, 0x10000, v{vt}")
        for k in range(PD): reads(k)
        for k in range(32):
            if k + PD < 32: reads(k+PD)
            out = min(PD, 31-k)*2
            e(f"s_waitcnt lgkmcnt({out})")
            q, s = steps[k]
            r = RING + (k % 8)*4
            xa = f"a[{32*q+4*s}:{32*q+4*s+3}]"
            e(f"v_mfma_f32_32x32x16_bf16 v[{ACC2}:{ACC2+15}], v[{r}:{r+3}], {xa}, " + ("0" if k == 0 else f"v[{ACC2}:{ACC2+15}]"))
    def silu_store(self, vm, acc, ks_sgpr_off, tag):
        e = self.e
        T = VT
        out = RING
        for half in range(2):
            b = acc + 8*half
            for i in range(4):
                e(f"v_cvt_pk_bf16_f32 v{T+i}, v{b+2*i}, v{b+2*i+1}")
            for i in range(4):
                e(f"v_lshlrev_b32 v{b+2*i}, 16, v{T+i}")
                e(f"v_and_b32 v{b+2*i+1}, 0xffff0000, v{T+i}")
            for i in range(8):
                e(f"v_mul_f32 v{T+4+i}, {NLOG2E}, v{b+i}")
            for i in range(8):
                e(f"v_exp_f32 v{T+4+i}, v{T+4+i}")
            for i in range(8):
                e(f"v_add_f32 v{T+4+i}, 1.0, v{T+4+i}")
            for i in range(8):
                e(f"v_rcp_f32 v{T+4+i}, v{T+4+i}")
            for i in range(8):
                e(f"v_mul_f32 v{b+i}, v{b+i}, v{T+4+i}")
            for i in range(4):
                e(f"v_cvt_pk_bf16_f32 v{out+4*half+i}, v{b+2*i}, v{b+2*i+1}")
            e(f"buffer_store_dwordx4 v[{out+4*half}:{out+4*half+3}], v{V_L16}, s[{SRD_WS}:{SRD_WS+3}], s{ks_sgpr_off} offen offset:{1024*half}")
            vm.issue(tag)
    def cmul(self, dr, di, ar_, ai, br, bi, t):
        e = self.e
        e(f"v_mul_f32 v{t}, v{ai}, v{bi}")
        e(f"v_fma_f32 v{dr}, v{ar_}, v{br}, -v{t}")
        e(f"v_mul_f32 v{t}, v{ai}, v{br}")
        e(f"v_fma_f32 v{di}, v{ar_}, v{bi}, v{t}")
    def csq(self, dr, di, sr_, si, t):
        e = self.e
        e(f"v_mul_f32 v{t}, v{si}, v{si}")
        e(f"v_mul_f32 v{di}, v{sr_}, v{si}") if di not in (sr_, si) else None
        assert di not in (sr_, si) and dr not in (sr_, si)
        e(f"v_fma_f32 v{dr}, v{sr_}, v{sr_}, -v{t}")
        e(f"v_add_f32 v{di}, v{di}, v{di}")
    def horner(self, ar_, ai, mr, mi, er, ei, t1, t2):
        e = self.e
        e(f"v_fma_f32 v{t1}, v{mr}, v{ar_}, v{er}")
        e(f"v_fma_f32 v{t2}, v{mr}, v{ai}, v{ei}")
        e(f"v_fma_f32 v{t1}, -v{mi}, v{ai}, v{t1}")
        e(f"v_fma_f32 v{t2}, v{mi}, v{ar_}, v{t2}")

    def gen(self):
        a = self.a; e = self.e
        kernel_header(a, self.name)
        e("s_cmp_ge_u32 s2, 256"); e("s_cbranch_scc1 K1_END")
        e("s_load_dwordx16 s[16:31], s[0:1], 0")
        e("s_load_dwordx4 s[32:35], s[0:1], 80")
        e("s_load_dwordx2 s[36:37], s[0:1], 96")
        e("s_load_dwordx4 s[40:43], s[0:1], 112")
        self.st(0)
        e("v_lshrrev_b32 v1, 6, v0")
        e(f"v_and_b32 v{V_LANE}, 63, v0")
        e(f"v_readfirstlane_b32 s{S_W}, v1")
        e("s_and_b32 s9, s2, 7"); e(f"s_lshr_b32 s{S_T0}, s2, 3")
        e(f"s_and_b32 s{S_C}, s9, 1"); e(f"s_lshl_b32 s{S_C}, s{S_C}, 3")
        e(f"s_lshr_b32 s{S_T1}, s{S_T0}, 2"); e(f"s_add_u32 s{S_C}, s{S_C}, s{S_T1}")
        e("s_lshr_b32 s9, s9, 1")
        e(f"s_and_b32 s{S_T0}, s{S_T0}, 3")
        e(f"s_lshl_b32 s{S_PG}, s9, 2"); e(f"s_add_u32 s{S_PG}, s{S_PG}, s{S_T0}")
        e(f"s_mul_i32 s{S_T1}, s9, 3"); e(f"s_add_u32 s{S_T1}, s{S_T1}, s{S_T0}"); e(f"s_lshl_b32 s{S_T1}, s{S_T1}, 8")
        e(f"s_lshl_b32 s{S_T2}, s9, 7"); e(f"s_add_u32 s{S_T2}, s{S_T2}, 3072")
        e(f"s_cmp_eq_u32 s{S_T0}, 3")
        e(f"s_cselect_b32 s{S_F0B}, s{S_T2}, s{S_T1}")
        e(f"s_cselect_b32 s{S_TYPE}, 1, 0")
        e(f"s_lshl_b32 s{S_U}, s{S_C}, 2"); e(f"s_add_u32 s{S_U}, s{S_U}, s9")
        e(f"s_and_b32 s{S_RG}, s{S_W}, 3")
        e(f"v_lshrrev_b32 v12, 4, v{V_LANE}")
        e(f"v_and_b32 v13, 15, v{V_LANE}")
        e("v_xor_b32 v13, v13, v12")
        e("v_lshlrev_b32 v13, 4, v13")
        e(f"v_lshl_add_u32 v{V_OX[0]}, v12, 10, v13")
        for ii in range(1, 4):
            rowadd = 16*(ii & 1) + 4*(ii >> 1) - ii
            e(f"v_xor_b32 v{V_OX[ii]}, {64*ii}, v{V_OX[0]}")
            e(f"v_add_u32 v{V_OX[ii]}, {rowadd*1024}, v{V_OX[ii]}")
        e(f"s_and_b32 s{S_T0}, s{S_W}, 1"); e(f"s_lshl_b32 s{S_T0}, s{S_T0}, 7")
        e(f"v_xor_b32 v{V_OB[0]}, s{S_T0}, v{V_OX[0]}")
        e(f"v_xor_b32 v{V_OB[1]}, 64, v{V_OB[0]}")
        e(f"v_add_u32 v{V_OB[1]}, {3*1024}, v{V_OB[1]}")
        e(f"s_lshl_b32 s{S_SOFX}, s{S_C}, 7"); e(f"s_lshr_b32 s{S_T0}, s{S_W}, 1"); e(f"s_lshl_b32 s{S_T0}, s{S_T0}, 5")
        e(f"s_add_u32 s{S_SOFX}, s{S_SOFX}, s{S_T0}"); e(f"s_and_b32 s{S_T0}, s{S_W}, 1"); e(f"s_lshl_b32 s{S_T0}, s{S_T0}, 3")
        e(f"s_add_u32 s{S_SOFX}, s{S_SOFX}, s{S_T0}"); e(f"s_lshl_b32 s{S_SOFX}, s{S_SOFX}, 10")
        e(f"s_lshl_b32 s{S_SOFB}, s{S_PG}, 5"); e(f"s_lshl_b32 s{S_T0}, s{S_RG}, 3"); e(f"s_add_u32 s{S_SOFB}, s{S_SOFB}, s{S_T0}")
        e(f"s_lshl_b32 s{S_SOFB}, s{S_SOFB}, 10")
        e(f"s_mul_i32 s{S_SOFP}, s{S_W}, {16*3584}"); e(f"s_add_u32 s{S_SOFP}, s{S_SOFP}, s{S_F0B}")
        e(f"v_lshrrev_b32 v12, 3, v{V_LANE}")
        e(f"v_mul_u32_u24 v{V_OP}, 3584, v12")
        e(f"v_bfe_u32 v12, v{V_LANE}, 4, 1"); e("v_lshlrev_b32 v12, 2, v12")
        e(f"v_and_b32 v13, 7, v{V_LANE}"); e("v_xor_b32 v13, v13, v12")
        e(f"v_lshl_add_u32 v{V_OP}, v13, 4, v{V_OP}")
        e(f"v_lshlrev_b32 v{V_L16}, 4, v{V_LANE}")
        e("s_waitcnt lgkmcnt(0)")
        srd(a, SRD_X, 16, 2048*1024)
        e(f"s_cmp_lt_u32 s{S_W}, 4")
        e(f"s_cselect_b32 s{SRD_B}, s22, s24"); e(f"s_cselect_b32 s{SRD_B+1}, s23, s25")
        e(f"s_and_b32 s{SRD_B+1}, s{SRD_B+1}, 0xffff"); e(f"s_mov_b32 s{SRD_B+2}, {512*1024}"); e(f"s_mov_b32 s{SRD_B+3}, 0x20000")
        vm = VM(a)
        srd(a, SRD_DBG, 40, 256)
        e(f"s_or_b32 s{S_T0}, s2, s{S_W}"); e(f"s_cmp_lg_u32 s{S_T0}, 0"); e("s_cbranch_scc1 K1_NONONCE")
        e(f"s_memrealtime s[{S_T0}:{S_T0+1}]"); e("s_waitcnt lgkmcnt(0)")
        e(f"s_or_b32 s{S_T0}, s{S_T0}, 1"); e(f"v_mov_b32 v12, s{S_T0}"); e("v_mov_b32 v13, 0")
        e("s_mov_b64 exec, 1")
        e(f"buffer_store_dword v12, v13, s[{SRD_DBG}:{SRD_DBG+3}], 0 offen sc1")
        e("s_mov_b64 exec, -1")
        a.label("K1_NONONCE")
        self.dma_x(vm, 0); self.dma_b(vm, 0)
        e(f"v_and_b32 v12, 31, v{V_LANE}"); e(f"s_lshl_b32 s{S_T0}, s{S_PG}, 5"); e(f"v_add_u32 v12, s{S_T0}, v12"); e("v_lshlrev_b32 v12, 1, v12")
        for (ptr, dst) in ((18, VT), (20, VT+1), (30, VT+2)):
            srd(a, SRD_E, ptr, 1024)
            e(f"buffer_load_ushort v{dst}, v12, s[{SRD_E}:{SRD_E+3}], 0 offen"); vm.issue("par")
        srd(a, SRD_W1, 32, 512*3584)
        self.dma_x(vm, 1); self.dma_b(vm, 1); self.dma_x(vm, 2); self.dma_b(vm, 2); self.dma_p(vm, 0, 0)
        srd(a, SRD_W2, 34, 1792*1024)
        e(f"s_lshr_b32 s{S_T0}, s{S_U}, 5"); e(f"s_cmp_eq_u32 s{S_T0}, 0")
        e(f"s_cselect_b32 s{SRD_C}, s26, s28"); e(f"s_cselect_b32 s{SRD_C+1}, s27, s29")
        e(f"s_and_b32 s{SRD_C+1}, s{SRD_C+1}, 0xffff"); e(f"s_mov_b32 s{SRD_C+2}, {512*1024}"); e(f"s_mov_b32 s{SRD_C+3}, 0x20000")
        e(f"v_and_b32 v12, 31, v{V_LANE}"); e(f"v_lshrrev_b32 v13, 5, v{V_LANE}"); e(f"v_and_b32 v15, 15, v{V_LANE}")
        e("v_xor_b32 v13, v13, v15"); e("v_lshlrev_b32 v13, 4, v13")
        e(f"v_lshl_add_u32 v{V_RB}, v12, 8, v13")
        e(f"s_lshl_b32 s{S_T0}, s{S_RG}, 13"); e(f"v_add_u32 v{V_RX}, s{S_T0}, v{V_RB}")
        e(f"v_lshrrev_b32 v12, 5, v{V_LANE}"); e("v_lshlrev_b32 v12, 3, v12"); e(f"v_bfe_u32 v13, v{V_LANE}, 2, 2"); e("v_add_u32 v12, v12, v13")
        e("v_lshlrev_b32 v12, 7, v12")
        e(f"v_bfe_u32 v13, v{V_LANE}, 3, 1"); e("v_lshl_add_u32 v12, v13, 6, v12")
        e(f"v_bfe_u32 v13, v{V_LANE}, 4, 1"); e("v_lshl_add_u32 v12, v13, 5, v12")
        e(f"v_and_b32 v13, 3, v{V_LANE}"); e(f"v_lshl_add_u32 v{V_T0}, v13, 3, v12")
        e(f"v_xor_b32 v{V_T1}, 64, v{V_T0}")
        srd(a, SRD_WS, 42, WS_USED)
        e(f"s_lshl_b32 s{S_T0}, s{S_PG}, 13"); e(f"s_add_u32 s{S_T0}, s{S_T0}, {E_OFF}")
        srd(a, SRD_E, 42, 8192, add_lo=f"s{S_T0}")
        e(f"s_lshl_b32 s{S_ACTB}, s{S_C}, 2"); e(f"s_add_u32 s{S_ACTB}, s{S_ACTB}, s{S_RG}"); e(f"s_mul_i32 s{S_ACTB}, s{S_ACTB}, {TILE}")
        e(f"s_cmp_ge_u32 s{S_W}, 4"); e("s_cbranch_scc1 K1_BWAVE")
        vmA = vm; vmB = vm.clone()
        self.gen_A(vmA)
        a.label("K1_BWAVE")
        self.gen_B(vmB)
        a.label("K1_END")
        e("s_endpgm")
        kernel_desc(a, self.name, 256, 128)
        return a.text()

    def gate_loads(self, vm):
        e = self.e; a = self.a
        e(f"s_lshl_b32 s{S_T0}, s{S_C}, 7"); e(f"s_lshl_b32 s{S_T1}, s{S_PG}, 3"); e(f"s_add_u32 s{S_T0}, s{S_T0}, s{S_T1}")
        e(f"s_lshl_b32 s{S_T1}, s{S_RG}, 1"); e(f"s_add_u32 s9, s{S_T0}, s{S_T1}")
        e(f"s_lshl_b32 s{S_T0}, s9, 10")
        e(f"buffer_load_dwordx4 v[64:67], v{V_L16}, s[{SRD_X}:{SRD_X+3}], s{S_T0} offen"); vm.issue("gx")
        e(f"buffer_load_dwordx4 v[72:75], v{V_L16}, s[{SRD_X}:{SRD_X+3}], s{S_T0} offen offset:1024"); vm.issue("gx")
        srd(a, SRD_W2, 36, 1024)
        e(f"buffer_load_dwordx4 v[68:71], v{V_L16}, s[{SRD_W2}:{SRD_W2+3}], 0 offen"); vm.issue("gx")
        srd(a, SRD_W2, 34, 1792*1024)
    def gate_compute(self, vm):
        e = self.e
        vm.wait("gx")
        for row, xr in ((0, 64), (1, 72)):
            acc = 80 + row
            e(f"v_mov_b32 v{acc}, 0")
            for i in range(4):
                e(f"v_lshlrev_b32 v76, 16, v{xr+i}"); e(f"v_and_b32 v77, 0xffff0000, v{xr+i}")
                e(f"v_lshlrev_b32 v78, 16, v{68+i}"); e(f"v_and_b32 v79, 0xffff0000, v{68+i}")
                e("v_mul_f32 v76, v76, v78"); e("v_mul_f32 v77, v77, v79")
                e("v_cvt_pk_bf16_f32 v76, v76, v77")
                e("v_lshlrev_b32 v77, 16, v76"); e("v_and_b32 v76, 0xffff0000, v76")
                e(f"v_add_f32 v{acc}, v{acc}, v77"); e(f"v_add_f32 v{acc}, v{acc}, v76")
        for dpp in ("row_shr:1", "row_shr:2", "row_shr:4", "row_shr:8", "row_bcast:15 row_mask:0xa", "row_bcast:31 row_mask:0xc"):
            e("s_nop 0")
            for acc in (80, 81):
                e(f"v_add_f32_dpp v{acc}, v{acc}, v{acc} {dpp}" + (" bound_ctrl:0" if "shr" in dpp else ""))
        for acc in (80, 81):
            e(f"v_cvt_pk_bf16_f32 v{acc}, v{acc}, v{acc}"); e(f"v_and_b32 v{acc}, 0xffff0000, v{acc}")
            e(f"v_mul_f32 v{acc}, {NLOG2E}, v{acc}")
        for acc in (80, 81): e(f"v_exp_f32 v{acc}, v{acc}")
        e("s_nop 0")
        for acc in (80, 81): e(f"v_add_f32 v{acc}, 1.0, v{acc}")
        for acc in (80, 81): e(f"v_rcp_f32 v{acc}, v{acc}")
        e("s_nop 0")
        e("v_cvt_pk_bf16_f32 v80, v80, v81")
        e("v_and_b32 v81, 0xffff0000, v80"); e("v_lshlrev_b32 v80, 16, v80")
        e(f"s_lshl_b32 s9, s9, 2"); e(f"s_add_u32 s9, s9, {G_OFF}")
        e("v_mov_b32 v82, 0")
        e("s_mov_b32 exec_lo, 0"); e("s_brev_b32 exec_hi, 1")
        e(f"buffer_store_dwordx2 v[80:81], v82, s[{SRD_WS}:{SRD_WS+3}], s9 offen"); vm.issue("gst")
        e("s_mov_b64 exec, -1")

    def params(self):
        e = self.e
        for k, r in enumerate((72, 73, 74)): e(f"v_lshlrev_b32 v{r}, 16, v{VT+k}")
        e(f"v_mul_f32 v75, {LOG2E}, v74"); e("v_exp_f32 v75, v75"); e("s_nop 0")
        e("v_cvt_pk_bf16_f32 v75, v75, v75"); e("v_and_b32 v75, 0xffff0000, v75")
        e("v_mul_f32 v76, v75, v72"); e("v_mul_f32 v77, v75, v73")
        e(f"v_mul_f32 v76, {LOG2E}, v76"); e("v_exp_f32 v76, v76")
        e(f"v_mul_f32 v77, {INV2PI}, v77"); e("v_rndne_f32 v78, v77"); e("v_sub_f32 v77, v77, v78")
        e("v_sin_f32 v78, v77"); e("v_cos_f32 v79, v77"); e("s_nop 0")
        e(f"v_mul_f32 v{V_LI}, v76, v78"); e(f"v_mul_f32 v{V_LR}, v76, v79")
        e(f"v_add_f32 v80, -1.0, v{V_LR}")
        e("v_cmp_ge_f32 vcc, |v72|, |v73|")
        e("s_nop 1")
        e("v_cndmask_b32 v81, v73, v72, vcc")
        e("v_cndmask_b32 v82, v72, v73, vcc")
        e(f"v_cndmask_b32 v83, v{V_LI}, v80, vcc")
        e(f"v_cndmask_b32 v84, v80, v{V_LI}, vcc")
        e("v_mov_b32 v85, -1.0"); e("v_cndmask_b32 v85, v85, 1.0, vcc") if False else None
        e("v_rcp_f32 v86, v81"); e("s_nop 0")
        e("v_mul_f32 v86, v82, v86")
        e("v_fma_f32 v87, v82, v86, v81")
        e("v_rcp_f32 v87, v87")
        e("v_fma_f32 v88, v84, v86, v83")
        e("v_fma_f32 v89, -v83, v86, v84")
        e(f"v_mul_f32 v{V_CR}, v88, v87")
        e("v_mul_f32 v89, v89, v87")
        e("v_sub_f32 v88, 0, v89")
        e(f"v_cndmask_b32 v{V_CI}, v88, v89, vcc")
        self.csq(80, 81, V_LR, V_LI, 90)
        self.csq(82, 83, 80, 81, 90)
        self.csq(80, 81, 82, 83, 90)
        self.csq(V_16R, V_16I, 80, 81, 90)
        self.csq(80, 81, V_16R, V_16I, 90)
        self.csq(82, 83, 80, 81, 90)
        self.csq(V_128R, V_128I, 82, 83, 90)
        self.csq(V_256R, V_256I, V_128R, V_128I, 90)
        e(f"v_cmp_lt_u32 vcc, 31, v{V_LANE}")
        e("v_mov_b32 v84, 1.0"); e("v_mov_b32 v85, 0")
        e(f"v_cndmask_b32 v86, v84, v{V_16R}, vcc"); e(f"v_cndmask_b32 v87, v85, v{V_16I}, vcc")
        e(f"s_bitcmp1_b32 s{S_RG}, 0"); e("s_cbranch_scc1 K1_PW1")
        e("v_mov_b32 v80, 1.0"); e("v_mov_b32 v81, 0")
        self.a.label("K1_PW1")
        e(f"s_bitcmp1_b32 s{S_RG}, 1"); e("s_cbranch_scc1 K1_PW2")
        e("v_mov_b32 v82, 1.0"); e("v_mov_b32 v83, 0")
        self.a.label("K1_PW2")
        self.cmul(88, 89, 86, 87, 80, 81, 90)
        self.cmul(V_PWR, V_PWI, 88, 89, 82, 83, 90)

    def barrier(self, vm, tags, idx):
        vm.wait(*tags, extra="lgkmcnt(0)")
        self.e("s_barrier")
        self.st(idx)

    def type_branch(self, fa, fb, lab):
        e = self.e
        e(f"s_cmp_lg_u32 s{S_TYPE}, 0"); e(f"s_cbranch_scc1 {lab}_B")
        fa()
        e(f"s_branch {lab}_J")
        self.a.label(f"{lab}_B")
        fb()
        self.a.label(f"{lab}_J")

    def refills(self, vm, b, pre):
        if b == 1:
            self.dma_x(vm, 3); self.dma_b(vm, 3)
        elif b == 2:
            self.dma_p(vm, 0, 1); self.dma_p(vm, 0, 2); self.dma_p(vm, 0, 3)
        elif b == 3:
            v2 = vm.clone()
            self.type_branch(lambda: (self.dma_p(vm, 1, 0), self.dma_p(vm, 1, 1)), lambda: self.dma_q0(v2), f"{pre}_R3")
            assert v2.ops == vm.ops
        elif b == 4:
            v2 = vm.clone()
            def fa(): self.dma_p(vm, 1, 2); self.dma_p(vm, 1, 3)
            self.type_branch(fa, lambda: self.dma_q1(v2), f"{pre}_R4")

    def gen_A(self, vm):
        a = self.a; e = self.e
        if self.prio: e("s_setprio 1")
        self.barrier(vm, ["X0", "B0"], 1)
        self.round_S(0)
        vm.wait("par")
        self.params()
        for q in range(1, 4):
            tags = [f"X{q}", f"B{q}"] + (["P00"] if q == 3 else [])
            self.barrier(vm, tags, 1+q)
            self.refills(vm, q, "KA")
            if q == 2:
                e("v_mov_b32 v12, 0")
                e(f"buffer_load_dword v{V_NONCE}, v12, s[{SRD_DBG}:{SRD_DBG+3}], 0 offen sc1"); vm.issue("nonce")
            self.round_S(q)
        e("s_nop 7"); e("s_nop 7")
        ur = lambda i: ACC0+i
        ui = lambda i: ACC1+i
        cur = (ur(0), ui(0)); pp = [(V_ER, V_EI), (VT+1, VT+2)]
        for i in range(1, 16):
            dst = pp[(15 - i) % 2]
            self.horner(cur[0], cur[1], V_LR, V_LI, ur(i), ui(i), dst[0], dst[1])
            cur = dst
        assert cur == (V_ER, V_EI)
        e(f"v_lshlrev_b32 v12, 3, v{V_LANE}"); e(f"s_lshl_b32 s{S_T0}, s{S_RG}, 9"); e(f"s_add_u32 s{S_T0}, s{S_T0}, {L_E}")
        e(f"v_add_u32 v12, s{S_T0}, v12")
        e(f"ds_write_b64 v12, v[{V_ER}:{V_EI}]")
        self.barrier(vm, ["P01", "P02", "P03"], 5)
        self.refills(vm, 4, "KA")
        e(f"v_and_b32 v12, 31, v{V_LANE}"); e("v_lshlrev_b32 v12, 3, v12"); e(f"v_add_u32 v12, {L_E}, v12")
        for s in range(8):
            e(f"ds_read_b64 v[{RING+2*s}:{RING+2*s+1}], v12 offset:{256*s}")
        e(f"v_mov_b32 v{V_PR}, 0"); e(f"v_mov_b32 v{V_PI}, 0")
        e("s_waitcnt lgkmcnt(0)")
        cur = (RING, RING+1)
        def capture(k, cur):
            if k % 2 == 0:
                if k == 8: return
                lab = a.newlabel("KA_CQ")
                e(f"s_cmp_eq_u32 s{S_RG}, {k//2}"); e(f"s_cbranch_scc0 {lab}")
                e(f"v_mov_b32 v{V_PR}, v{cur[0]}"); e(f"v_mov_b32 v{V_PI}, v{cur[1]}")
                a.label(lab)
            else:
                lab = a.newlabel("KA_CQ")
                e(f"s_cmp_eq_u32 s{S_RG}, {k//2}"); e(f"s_cbranch_scc0 {lab}")
                e(f"v_mov_b32 v{VT+3}, v{cur[0]}"); e(f"v_mov_b32 v{VT+4}, v{cur[1]}")
                a.label(lab)
        capture(1, cur)
        pp = [(VT+5, VT+6), (VT+7, VT+8)]
        for s in range(1, 8):
            dst = pp[s % 2]
            self.horner(cur[0], cur[1], V_16R, V_16I, RING+2*s, RING+2*s+1, dst[0], dst[1])
            cur = dst
            capture(s+1, cur)
        e(f"v_cmp_lt_u32 vcc, 31, v{V_LANE}"); e("s_nop 1")
        e(f"v_cndmask_b32 v{V_PR}, v{V_PR}, v{VT+3}, vcc"); e(f"v_cndmask_b32 v{V_PI}, v{V_PI}, v{VT+4}, vcc")
        vm.wait("nonce")
        lab = "KA_NONCE"
        e(f"s_mov_b32 s{S_SPIN}, 0")
        a.label(lab)
        e(f"v_readfirstlane_b32 s{S_TA}, v{V_NONCE}")
        e("s_nop 3")
        e(f"s_cmp_lg_u32 s{S_TA}, 0"); e(f"s_cbranch_scc1 {lab}_OK")
        e(f"s_add_u32 s{S_SPIN}, s{S_SPIN}, 1"); e(f"s_cmp_gt_u32 s{S_SPIN}, {SPIN_MAX}"); e(f"s_cbranch_scc1 {lab}_OK")
        e("v_mov_b32 v12, 0")
        e(f"buffer_load_dword v{V_NONCE}, v12, s[{SRD_DBG}:{SRD_DBG+3}], 0 offen sc1")
        e("s_waitcnt vmcnt(0)")
        e(f"s_branch {lab}")
        a.label(f"{lab}_OK")
        e(f"s_not_b32 s{S_TB}, s{S_TA}")
        g = RING + 16
        e(f"v_mov_b32 v{g}, v{cur[0]}"); e(f"v_mov_b32 v{g+1}, s{S_TA}"); e(f"v_mov_b32 v{g+2}, v{cur[1]}"); e(f"v_mov_b32 v{g+3}, s{S_TB}")
        e(f"s_lshl_b32 s{S_T0}, s{S_RG}, 3"); e(f"s_lshl_b32 s{S_T1}, 0xff, s{S_T0}")
        e(f"s_lshl_b32 s{S_T2}, s{S_C}, 9")
        e(f"s_mov_b32 exec_lo, s{S_T1}"); e("s_mov_b32 exec_hi, 0")
        e(f"buffer_store_dwordx4 v[{g}:{g+3}], v{V_L16}, s[{SRD_E}:{SRD_E+3}], s{S_T2} offen sc1"); vm.issue("pub")
        e("s_mov_b64 exec, -1")
        self.st(6)
        self.barrier(vm, ["P10", "P11", "P12", "P13"], 7)
        vmx = vm.clone()
        def fa():
            self.p_tile(0)
            e("s_nop 7"); e("s_nop 7")
            e(f"s_lshr_b32 s{S_T0}, s{S_F0B}, 5"); e(f"s_add_u32 s{S_T0}, s{S_T0}, 4"); e(f"s_lshl_b32 s{S_T0}, s{S_T0}, 10")
            e(f"s_add_u32 s{S_T0}, s{S_T0}, s{S_ACTB}")
            self.silu_store(vm, ACC2, S_T0, "st")
        def fb():
            self.prepass(vmx)
        self.type_branch(fa, fb, "KA_P1")
        self.st(8)
        self.lookback()
        self.st(9)
        e(f"v_fma_f32 v{V_PR}, v{V_PWR}, v{VT+1}, v{V_PR}"); e(f"v_fma_f32 v{V_PI}, v{V_PWR}, v{VT+2}, v{V_PI}")
        e(f"v_fma_f32 v{V_PR}, -v{V_PWI}, v{VT+2}, v{V_PR}"); e(f"v_fma_f32 v{V_PI}, v{V_PWI}, v{VT+1}, v{V_PI}")
        prev = (V_PR, V_PI)
        t1, t2 = VT+3, VT+4
        for i in range(16):
            e(f"v_fma_f32 v{t1}, v{V_LR}, v{prev[0]}, v{ur(i)}")
            e(f"v_fma_f32 v{t2}, v{V_LR}, v{prev[1]}, v{ui(i)}")
            e(f"v_fma_f32 v{ur(i)}, -v{V_LI}, v{prev[1]}, v{t1}")
            e(f"v_fma_f32 v{ui(i)}, v{V_LI}, v{prev[0]}, v{t2}")
            prev = (ur(i), ui(i))
        for i in range(16):
            e(f"v_mul_f32 v{t1}, v{V_CI}, v{ui(i)}")
            e(f"v_mul_f32 v{t2}, v{V_CI}, v{ur(i)}")
            e(f"v_fma_f32 v{ur(i)}, v{V_CR}, v{ur(i)}, -v{t1}")
            e(f"v_fma_f32 v{ui(i)}, -v{V_CR}, v{ui(i)}, -v{t2}")
        e(f"v_and_b32 v12, 31, v{V_LANE}"); e("v_mul_u32_u24 v12, 72, v12"); e(f"v_lshrrev_b32 v13, 5, v{V_LANE}"); e("v_lshl_add_u32 v12, v13, 3, v12")
        e(f"s_mul_i32 s{S_T0}, s{S_RG}, 4608"); e(f"s_add_u32 s{S_T0}, s{S_T0}, {L_H}"); e(f"v_add_u32 v12, s{S_T0}, v12")
        for part, acc in ((0, ACC0), (1, ACC1)):
            for q in range(4):
                r = RING + part*8 + q*2
                e(f"v_cvt_pk_bf16_f32 v{r}, v{acc+4*q}, v{acc+4*q+1}"); e(f"v_cvt_pk_bf16_f32 v{r+1}, v{acc+4*q+2}, v{acc+4*q+3}")
                e(f"ds_write_b64 v12, v[{r}:{r+1}] offset:{part*2304 + 16*q}")
        e(f"v_lshrrev_b32 v13, 5, v{V_LANE}"); e("v_lshlrev_b32 v13, 3, v13"); e(f"v_bfe_u32 v15, v{V_LANE}, 2, 2"); e("v_add_u32 v13, v13, v15")
        e("v_mul_u32_u24 v13, 72, v13"); e(f"v_bfe_u32 v15, v{V_LANE}, 4, 1"); e("v_lshl_add_u32 v13, v15, 5, v13")
        e(f"v_and_b32 v15, 3, v{V_LANE}"); e("v_lshl_add_u32 v13, v15, 3, v13"); e(f"v_add_u32 v13, s{S_T0}, v13")
        e("s_waitcnt lgkmcnt(0)")
        for part in range(2):
            for j in range(2):
                r = RING + 16 + (part*2+j)*4
                o = part*2304 + 16*j*72
                e(f"ds_read_b64_tr_b16 v[{r}:{r+1}], v13 offset:{o}")
                e(f"ds_read_b64_tr_b16 v[{r+2}:{r+3}], v13 offset:{o+4*72}")
        e(f"s_lshl_b32 s{S_T0}, s{S_PG}, 12"); e(f"s_add_u32 s{S_T0}, s{S_T0}, {112*1024}"); e(f"s_add_u32 s{S_T0}, s{S_T0}, s{S_ACTB}")
        for k in range(4):
            r = RING + 16 + k*4
            e(f"s_waitcnt lgkmcnt({6-2*k})")
            e(f"buffer_store_dwordx4 v[{r}:{r+3}], v{V_L16}, s[{SRD_WS}:{SRD_WS+3}], s{S_T0} offen offset:{1024*k}")
        self.st(10)
        self.finish("A")

    def lookback(self):
        a = self.a; e = self.e
        AD = [1, 2, 3, 4, 5, 6, 7, 12]
        e(f"v_and_b32 v13, 31, v{V_LANE}"); e("v_lshlrev_b32 v13, 4, v13"); e(f"v_lshrrev_b32 v15, 5, v{V_LANE}"); e("v_lshlrev_b32 v15, 9, v15")
        e("v_sub_u32 v13, v13, v15")
        e(f"s_lshl_b32 s{S_T0}, s{S_C}, 9"); e(f"s_sub_u32 s{S_T0}, s{S_T0}, 512")
        e(f"v_add_u32 v{AD[0]}, s{S_T0}, v13")
        for i in range(1, 8):
            e(f"v_add_u32 v{AD[i]}, {-1024*i}, v{AD[0]}")
        e(f"s_mov_b32 s{S_SPIN}, 0")
        a.label("KA_LB")
        for i in range(8):
            e(f"buffer_load_dwordx4 v[{RING+4*i}:{RING+4*i+3}], v{AD[i]}, s[{SRD_E}:{SRD_E+3}], 0 offen sc1")
        e(f"v_mov_b32 v{VT}, 0")
        e("s_waitcnt vmcnt(0)")
        for i in range(8):
            r = RING + 4*i
            e(f"v_cmp_le_i32 vcc, 0, v{AD[i]}")
            e(f"v_xor_b32 v{VT+3}, s{S_TA}, v{r+1}"); e(f"v_xor_b32 v{VT+4}, s{S_TB}, v{r+3}")
            e(f"v_or_b32 v{VT+3}, v{VT+3}, v{VT+4}")
            e(f"v_cndmask_b32 v{VT+3}, 0, v{VT+3}, vcc")
            e(f"v_or_b32 v{VT}, v{VT}, v{VT+3}")
        e(f"v_cmp_ne_u32 vcc, 0, v{VT}")
        e(f"s_add_u32 s{S_SPIN}, s{S_SPIN}, 1"); e(f"s_cmp_gt_u32 s{S_SPIN}, {SPIN_MAX}"); e("s_cbranch_scc1 KA_LB_OK")
        e("s_nop 1")
        e("s_cbranch_vccnz KA_LB")
        a.label("KA_LB_OK")
        cur = (RING+28, RING+30); pp = [(VT+5, VT+6), (VT+7, VT+8)]
        for i in range(6, -1, -1):
            dst = pp[i % 2]
            self.horner(cur[0], cur[1], V_256R, V_256I, RING+4*i, RING+4*i+2, dst[0], dst[1])
            cur = dst
        self.cmul(VT+9, VT+10, cur[0], cur[1], V_128R, V_128I, VT+3)
        e(f"v_cmp_lt_u32 vcc, 31, v{V_LANE}"); e("s_nop 1")
        e(f"v_cndmask_b32 v{VT+1}, v{cur[0]}, v{VT+9}, vcc"); e(f"v_cndmask_b32 v{VT+2}, v{cur[1]}, v{VT+10}, vcc")
        e(f"v_mov_b32 v{VT+3}, v{VT+1}"); e(f"v_mov_b32 v{VT+4}, v{VT+2}")
        e("s_nop 1")
        e(f"v_permlane32_swap_b32 v{VT+3}, v{VT+1}"); e(f"v_permlane32_swap_b32 v{VT+4}, v{VT+2}")
        e("s_nop 1")
        e(f"v_add_f32 v{VT+1}, v{VT+1}, v{VT+3}"); e(f"v_add_f32 v{VT+2}, v{VT+2}, v{VT+4}")

    def prepass(self, vm):
        e = self.e
        e(f"v_lshrrev_b32 v12, 5, v{V_LANE}"); e("v_lshlrev_b32 v12, 2, v12"); e(f"v_bfe_u32 v13, v{V_LANE}, 2, 2"); e("v_add_u32 v12, v12, v13")
        e("v_lshlrev_b32 v12, 7, v12")
        e(f"v_bfe_u32 v13, v{V_LANE}, 3, 1"); e("v_lshl_add_u32 v12, v13, 6, v12")
        e(f"v_bfe_u32 v13, v{V_LANE}, 4, 1"); e("v_lshl_add_u32 v12, v13, 5, v12")
        e(f"v_and_b32 v13, 3, v{V_LANE}"); e("v_lshl_add_u32 v12, v13, 3, v12")
        e(f"s_and_b32 s{S_T0}, s{S_RG}, 1"); e(f"s_lshl_b32 s{S_T1}, s{S_T0}, 6"); e(f"v_xor_b32 v12, s{S_T1}, v12")
        e(f"s_lshr_b32 s{S_T1}, s{S_RG}, 1"); e(f"s_mul_i32 s{S_T2}, s{S_T1}, {7*2048}"); e(f"s_add_u32 s{S_T2}, s{S_T2}, {L_Q0}")
        e(f"v_add_u32 v12, s{S_T2}, v12")
        for n in range(7):
            r = RING + 4*n
            e(f"ds_read_b64_tr_b16 v[{r}:{r+1}], v12 offset:{2048*n}")
            e(f"ds_read_b64_tr_b16 v[{r+2}:{r+3}], v12 offset:{2048*n+1024}")
        e(f"s_and_b32 s{S_T2}, s{S_U}, 7"); e(f"s_lshl_b32 s{S_T2}, s{S_T2}, 1"); e(f"s_add_u32 s{S_T2}, s{S_T2}, s{S_T0}"); e(f"s_mul_i32 s{S_T2}, s{S_T2}, {TILE}")
        e(f"s_lshr_b32 s{S_T3}, s{S_U}, 3"); e(f"s_mul_i32 s{S_T3}, s{S_T3}, 14"); e(f"s_mul_i32 s{S_T1}, s{S_T1}, 7"); e(f"s_add_u32 s{S_T3}, s{S_T3}, s{S_T1}")
        e(f"s_lshl_b32 s{S_T3}, s{S_T3}, 10"); e(f"s_add_u32 s{S_T2}, s{S_T2}, s{S_T3}"); e(f"s_add_u32 s{S_T2}, s{S_T2}, {WF_OFF}")
        e(f"s_add_u32 s{S_T3}, s{S_T2}, 4096")
        for n in range(7):
            r = RING + 4*n
            e(f"s_waitcnt lgkmcnt({min(15, 12-2*n)})")
            so = S_T2 if n < 4 else S_T3
            e(f"buffer_store_dwordx4 v[{r}:{r+3}], v{V_L16}, s[{SRD_WS}:{SRD_WS+3}], s{so} offen offset:{1024*(n%4)}")
        e(f"v_and_b32 v12, 31, v{V_LANE}"); e(f"v_lshrrev_b32 v13, 5, v{V_LANE}"); e(f"v_and_b32 v15, 15, v{V_LANE}")
        e("v_xor_b32 v13, v13, v15"); e("v_lshlrev_b32 v13, 4, v13"); e("v_lshl_add_u32 v12, v12, 9, v13")
        e(f"s_lshl_b32 s{S_T0}, s{S_RG}, 7"); e(f"v_xor_b32 v12, s{S_T0}, v12")
        for n4 in range(4):
            r = ACC2 + 4*n4
            if n4:
                e(f"v_xor_b32 v13, {32*n4}, v12")
                e(f"ds_read_b128 v[{r}:{r+3}], v13 offset:{L_Q1}")
            else:
                e(f"ds_read_b128 v[{r}:{r+3}], v12 offset:{L_Q1}")
        e(f"s_lshr_b32 s{S_T0}, s{S_U}, 1"); e(f"s_and_b32 s{S_T0}, s{S_T0}, 15"); e(f"s_mul_i32 s{S_T0}, s{S_T0}, {TILE}")
        e(f"s_and_b32 s{S_T1}, s{S_U}, 1"); e(f"s_lshl_b32 s{S_T1}, s{S_T1}, 5"); e(f"s_lshl_b32 s{S_T2}, s{S_RG}, 3"); e(f"s_add_u32 s{S_T1}, s{S_T1}, s{S_T2}")
        e(f"s_lshr_b32 s{S_T2}, s{S_U}, 5"); e(f"s_lshl_b32 s{S_T2}, s{S_T2}, 1"); e(f"s_add_u32 s{S_T1}, s{S_T1}, s{S_T2}"); e(f"s_add_u32 s{S_T1}, s{S_T1}, 112")
        e(f"s_lshl_b32 s{S_T1}, s{S_T1}, 10"); e(f"s_add_u32 s{S_T0}, s{S_T0}, s{S_T1}"); e(f"s_add_u32 s{S_T0}, s{S_T0}, {WF_OFF}")
        e(f"s_add_u32 s{S_T1}, s{S_T0}, 4096")
        offs = [(S_T0, 0), (S_T0, 1024), (S_T1, 0), (S_T1, 1024)]
        for n4 in range(4):
            r = ACC2 + 4*n4
            e(f"s_waitcnt lgkmcnt({3-n4})")
            e(f"buffer_store_dwordx4 v[{r}:{r+3}], v{V_L16}, s[{SRD_WS}:{SRD_WS+3}], s{offs[n4][0]} offen offset:{offs[n4][1]}")

    def gen_B(self, vm):
        a = self.a; e = self.e
        self.gate_loads(vm)
        self.barrier(vm, ["X0", "B0"], 1)
        self.round_X(0)
        for q in range(1, 4):
            tags = [f"X{q}", f"B{q}"] + (["P00"] if q == 3 else [])
            self.barrier(vm, tags, 1+q)
            self.refills(vm, q, "KB")
            self.round_X(q)
            if q == 2: self.gate_compute(vm)
        e("s_waitcnt lgkmcnt(0)")
        self.p_quarter(0, L_P0[0], True)
        self.barrier(vm, ["P01", "P02", "P03"], 5)
        self.refills(vm, 4, "KB")
        for q in range(1, 4):
            self.p_quarter(q, L_P0[q], False)
        self.st(6)
        self.barrier(vm, ["P10", "P11", "P12", "P13"], 7)
        e("s_nop 7"); e("s_nop 7")
        e(f"s_lshr_b32 s{S_T0}, s{S_F0B}, 5"); e(f"s_lshl_b32 s{S_T0}, s{S_T0}, 10"); e(f"s_add_u32 s{S_T0}, s{S_T0}, s{S_ACTB}")
        self.silu_store(vm, ACC0, S_T0, "st")
        e(f"s_add_u32 s{S_T0}, s{S_T0}, 2048")
        self.silu_store(vm, ACC1, S_T0, "st")
        self.st(8)
        e(f"s_cmp_lg_u32 s{S_TYPE}, 0"); e("s_cbranch_scc1 KB_FIN")
        self.p_tile(1)
        e("s_nop 7"); e("s_nop 7")
        e(f"s_lshr_b32 s{S_T0}, s{S_F0B}, 5"); e(f"s_add_u32 s{S_T0}, s{S_T0}, 6"); e(f"s_lshl_b32 s{S_T0}, s{S_T0}, 10")
        e(f"s_add_u32 s{S_T0}, s{S_T0}, s{S_ACTB}")
        self.silu_store(vm, ACC2, S_T0, "st")
        a.label("KB_FIN")
        self.st(10)
        self.finish("B")

    def p_quarter(self, q, lds, first):
        e = self.e
        if lds + 2048*7 + 512 >= 65536:
            e(f"v_add_u32 v{V_A0}, {lds}, v{V_T0}"); e(f"v_add_u32 v{V_A1}, {lds}, v{V_T1}")
            t0, t1, base = V_A0, V_A1, 0
        else:
            t0, t1, base = V_T0, V_T1, lds
        PD = 2
        def reads(s):
            r = RING + ((2*s) % 8)*4; r2 = RING + ((2*s+1) % 8)*4
            o = base + 2048*s
            e(f"ds_read_b64_tr_b16 v[{r}:{r+1}], v{t0} offset:{o}")
            e(f"ds_read_b64_tr_b16 v[{r+2}:{r+3}], v{t0} offset:{o+512}")
            e(f"ds_read_b64_tr_b16 v[{r2}:{r2+1}], v{t1} offset:{o}")
            e(f"ds_read_b64_tr_b16 v[{r2+2}:{r2+3}], v{t1} offset:{o+512}")
        for s in range(PD): reads(s)
        for s in range(8):
            if s + PD < 8: reads(s+PD)
            out = min(PD, 7-s)*4
            e(f"s_waitcnt lgkmcnt({out})")
            r = RING + ((2*s) % 8)*4; r2 = RING + ((2*s+1) % 8)*4
            xa = f"a[{32*q+4*s}:{32*q+4*s+3}]"
            f0 = first and s == 0
            e(f"v_mfma_f32_32x32x16_bf16 v[{ACC0}:{ACC0+15}], v[{r}:{r+3}], {xa}, " + ("0" if f0 else f"v[{ACC0}:{ACC0+15}]"))
            e(f"v_mfma_f32_32x32x16_bf16 v[{ACC1}:{ACC1+15}], v[{r2}:{r2+3}], {xa}, " + ("0" if f0 else f"v[{ACC1}:{ACC1+15}]"))

    def finish(self, role):
        if not self.stamp:
            self.e("s_endpgm"); return
        e = self.e
        e("s_waitcnt vmcnt(0)")
        self.st(11)
        e("s_load_dwordx2 s[40:41], s[0:1], 72")
        e("s_waitcnt lgkmcnt(0)")
        e(f"s_lshl_b32 s{S_T0}, s2, 3"); e(f"s_add_u32 s{S_T0}, s{S_T0}, s{S_W}"); e(f"s_lshl_b32 s{S_T0}, s{S_T0}, 6")
        e(f"s_add_u32 s40, s40, s{S_T0}"); e("s_addc_u32 s41, s41, 0")
        e("v_mov_b32 v5, 0"); e("s_mov_b64 exec, 1")
        for k in range(3):
            for i in range(4):
                e(f"v_mov_b32 v{i}, s{82+2*min(4*k+i,9)}")
            e("s_nop 1")
            e(f"global_store_dwordx4 v5, v[0:3], s[40:41] offset:{16*k}")
            e("s_nop 1")
        e("s_endpgm")

def gen_k1(name="k1_kernel", **kw):
    return K1(name, **kw).gen()
```

```python
from asmlib import *
ACT_OFF = 0
TILE = 176*1024
WF_OFF = 64*TILE
G_OFF = WF_OFF + 16*TILE
E_OFF = G_OFF + 0x10000
WS_USED = E_OFF + 0x20000
STAMP_OFF = 0x1000000

def cvt_bf16_round(a, dst_pk, s0, s1):
    a.e(f"v_cvt_pk_bf16_f32 v{dst_pk}, v{s0}, v{s1}")

def gen_k2(name="k2_kernel", stamp=False, D=8, splits=(0,48,96,136,176), mapping="2d", epi_late=False, order="WAWA", exp=""):
    a = Asm(); e = a.e
    kernel_header(a, name)
    RING = 32
    NRING = D*16
    ACCB, ACCY = 0, 64
    e("s_cmp_ge_u32 s2, 256"); e("s_cbranch_scc1 K2_END")
    e("s_load_dwordx2 s[4:5], s[0:1], 0")
    e("s_load_dwordx2 s[6:7], s[0:1], 64")
    e("s_load_dwordx2 s[8:9], s[0:1], 104")
    e("s_load_dwordx2 s[10:11], s[0:1], 120")
    if stamp:
        e("s_memrealtime s[60:61]")
        e("s_memtime s[76:77]")
    e("v_lshrrev_b32 v1, 6, v0")
    e("v_and_b32 v2, 63, v0")
    e("v_readfirstlane_b32 s12, v1")
    e("v_lshlrev_b32 v1, 4, v2")
    e("s_and_b32 s13, s2, 7"); e("s_lshr_b32 s14, s2, 3")
    if mapping == "2d":
        e("s_lshr_b32 s15, s13, 1"); e("s_lshl_b32 s15, s15, 3"); e("s_lshr_b32 s16, s14, 2"); e("s_add_u32 s15, s15, s16")
        e("s_and_b32 s16, s13, 1"); e("s_lshl_b32 s16, s16, 2"); e("s_and_b32 s17, s14, 3"); e("s_add_u32 s16, s16, s17")
    elif mapping == "rows":
        e("s_lshl_b32 s15, s13, 2"); e("s_lshr_b32 s16, s14, 3"); e("s_add_u32 s15, s15, s16")
        e("s_and_b32 s16, s14, 7")
    elif mapping == "same":
        e("s_mov_b32 s15, 0"); e("s_mov_b32 s16, 0")
    elif mapping == "xcdsame":
        e("s_mov_b32 s15, s13"); e("s_mov_b32 s16, s13")
    elif mapping == "bad":
        e("s_mov_b32 s15, s14"); e("s_mov_b32 s16, s13")
    ks = splits
    nb = [ (min(ks[i+1],112)-min(ks[i],112))//D for i in range(4)]
    ny = [ (max(ks[i+1],112)-max(ks[i],112))//D for i in range(4)]
    if "allb" in exp:
        nb = [(ks[i+1]-ks[i])//D for i in range(4)]; ny = [0]*4
    for i in range(4):
        assert "allb" in exp or (min(ks[i+1],112)-min(ks[i],112)) % D == 0 and (max(ks[i+1],112)-max(ks[i],112)) % D == 0
    def tbl(vals): return sum(v << (8*i) for i, v in enumerate(vals))
    e("s_lshl_b32 s22, s12, 3")
    e(f"s_lshr_b32 s18, {hex(tbl(ks[:4]))}, s22"); e("s_and_b32 s18, s18, 0xff")
    e(f"s_lshr_b32 s19, {hex(tbl(ks[1:]))}, s22"); e("s_and_b32 s19, s19, 0xff")
    e(f"s_lshr_b32 s20, {hex(tbl(nb))}, s22"); e("s_and_b32 s20, s20, 0xff")
    e(f"s_lshr_b32 s21, {hex(tbl(ny))}, s22"); e("s_and_b32 s21, s21, 0xff")
    e("s_lshl_b32 s19, s19, 10")
    e("s_lshl_b32 s18, s18, 10")
    e(f"s_mul_i32 s23, s15, {2*TILE}")
    e(f"s_mul_i32 s24, s16, {2*TILE}")
    e(f"s_add_u32 s24, s24, {WF_OFF}")
    e("s_waitcnt lgkmcnt(0)")
    def mk(dst, offreg, extra):
        e(f"s_add_u32 s{dst}, s10, s{offreg}"); e(f"s_addc_u32 s{dst+1}, s11, 0")
        if extra:
            e(f"s_add_u32 s{dst}, s{dst}, {extra}"); e(f"s_addc_u32 s{dst+1}, s{dst+1}, 0")
        e(f"s_and_b32 s{dst+1}, s{dst+1}, 0xffff"); e(f"s_mov_b32 s{dst+2}, " + ("s19" if "nooob" not in exp else "0x1000000")); e(f"s_mov_b32 s{dst+3}, 0x20000")
    mk(28, 23, 0); mk(32, 23, TILE); mk(36, 24, 0); mk(40, 24, TILE)
    e("s_add_u32 s25, s18, 4096")
    def issue(slot, s0="s18", s1="s25"):
        so = s0 if slot < 4 else s1
        o = (slot % 4)*1024
        r = RING + slot*16
        if order == "WAWA":
            e(f"buffer_load_dwordx4 v[{r}:{r+3}], v1, s[36:39], {so} offen offset:{o}")
            e(f"buffer_load_dwordx4 v[{r+4}:{r+7}], v1, s[28:31], {so} offen offset:{o}")
            e(f"buffer_load_dwordx4 v[{r+8}:{r+11}], v1, s[40:43], {so} offen offset:{o}")
            e(f"buffer_load_dwordx4 v[{r+12}:{r+15}], v1, s[32:35], {so} offen offset:{o}")
        else:
            e(f"buffer_load_dwordx4 v[{r+4}:{r+7}], v1, s[28:31], {so} offen offset:{o}")
            e(f"buffer_load_dwordx4 v[{r+12}:{r+15}], v1, s[32:35], {so} offen offset:{o}")
            e(f"buffer_load_dwordx4 v[{r}:{r+3}], v1, s[36:39], {so} offen offset:{o}")
            e(f"buffer_load_dwordx4 v[{r+8}:{r+11}], v1, s[40:43], {so} offen offset:{o}")
    assert D == 8
    e("v_lshrrev_b32 v3, 4, v0")
    e("v_and_b32 v4, 15, v0")
    e("v_bfe_u32 v5, v3, 2, 1"); e("v_lshlrev_b32 v5, 4, v5")
    e("v_lshrrev_b32 v6, 3, v3"); e("v_lshl_add_u32 v5, v6, 2, v5")
    e("v_and_b32 v6, 3, v3"); e("v_add_u32 v5, v5, v6")
    e("s_lshl_b32 s26, s15, 6")
    e("v_add_u32 v5, s26, v5")
    e("s_lshl_b32 s27, s16, 7")
    e("v_lshlrev_b32 v6, 10, v5"); e("v_lshl_add_u32 v6, v4, 3, v6"); e("v_add_u32 v6, s27, v6")
    e("v_lshlrev_b32 v7, 2, v5")
    e("v_lshlrev_b32 v22, 3, v4"); e("v_add_u32 v22, s27, v22")
    e("s_lshl_b32 s27, s27, 1")
    e("v_lshlrev_b32 v23, 11, v5"); e("v_lshl_add_u32 v23, v4, 4, v23"); e("v_add_u32 v23, s27, v23")
    srd(a, 44, 4, 2048*512*2)
    srd(a, 48, 6, 1024)
    srd(a, 52, 10, 8192, add_lo=G_OFF)
    srd(a, 56, 8, 2048*512*4)
    rowoff = [0, 8, 32, 40]
    def epi_loads():
        for k in range(4):
            e(f"s_mov_b32 s62, {rowoff[k]*1024}")
            e(f"buffer_load_dwordx2 v[{8+2*k}:{9+2*k}], v6, s[44:47], s62 offen")
            e(f"buffer_load_dword v{16+k}, v7, s[52:55], 0 offen offset:{rowoff[k]*4}")
        e("buffer_load_dwordx2 v[20:21], v22, s[48:51], 0 offen")
    for s in range(2): issue(s)
    if not epi_late: epi_loads()
    for s in range(2, D): issue(s)
    NEPI = 9
    e("s_add_u32 s18, s18, 8192"); e("s_add_u32 s25, s25, 8192")
    for i in range(4): e(f"v_mov_b32 v{24+i}, 0")
    e("s_nop 1")
    for i in range(8):
        e(f"v_mfma_f32_32x32x16_bf16 a[{16*i}:{16*i+15}], v[24:27], v[24:27], 0")
    if stamp:
        e("s_memrealtime s[70:71]")
        e("s_waitcnt vmcnt(%d)" % (28 if epi_late else 37))
        e("s_memrealtime s[72:73]")
        e("s_memrealtime s[74:75]")
    def loop(lab, acc, cnt, first):
        e(f"s_cmp_eq_u32 s{cnt}, 0"); e(f"s_cbranch_scc1 {lab}_done")
        a.label(lab)
        for s in range(D):
            r = RING + s*16
            e("s_waitcnt vmcnt(%d)" % (4*D-4))
            e(f"v_mfma_f32_32x32x16_bf16 a[{acc}:{acc+15}], v[{r}:{r+3}], v[{r+4}:{r+7}], a[{acc}:{acc+15}]")
            e(f"v_mfma_f32_32x32x16_bf16 a[{acc+32}:{acc+47}], v[{r+8}:{r+11}], v[{r+4}:{r+7}], a[{acc+32}:{acc+47}]")
            e(f"v_mfma_f32_32x32x16_bf16 a[{acc+16}:{acc+31}], v[{r}:{r+3}], v[{r+12}:{r+15}], a[{acc+16}:{acc+31}]")
            e(f"v_mfma_f32_32x32x16_bf16 a[{acc+48}:{acc+63}], v[{r+8}:{r+11}], v[{r+12}:{r+15}], a[{acc+48}:{acc+63}]")
            issue(s)
        e("s_add_u32 s18, s18, 8192"); e("s_add_u32 s25, s25, 8192")
        e(f"s_sub_u32 s{cnt}, s{cnt}, 1"); e(f"s_cmp_lg_u32 s{cnt}, 0"); e(f"s_cbranch_scc1 {lab}")
        a.label(f"{lab}_done")
    loop("K2_LB", ACCB, 20, True)
    loop("K2_LY", ACCY, 21, False)
    if stamp:
        e("s_memrealtime s[66:67]")
        e("s_memtime s[78:79]")
    if epi_late: epi_loads()
    PBUF = 64*272
    e("v_and_b32 v3, 31, v2"); e("v_lshrrev_b32 v4, 5, v2")
    e("v_mul_u32_u24 v3, 272, v3"); e("v_lshl_add_u32 v3, v4, 4, v3")
    e(f"s_mul_i32 s26, s12, {PBUF}")
    e("v_add_u32 v3, s26, v3")
    e("s_nop 7"); e("s_nop 7")
    def wr(acc, addr):
        for ci in range(2):
            for ri in range(2):
                for q in range(4):
                    r = acc + 16*(2*ci+ri) + 4*q
                    e(f"ds_write_b128 {addr}, a[{r}:{r+3}] offset:{ri*32*272 + ci*128 + q*32}")
    e("s_cmp_ge_u32 s12, 3"); e("s_cbranch_scc1 K2_NOB")
    wr(ACCB, "v3")
    a.label("K2_NOB")
    e("s_cmp_lt_u32 s12, 2"); e("s_cbranch_scc1 K2_NOY")
    e(f"v_add_u32 v3, {PBUF}, v3")
    wr(ACCY, "v3")
    a.label("K2_NOY")
    e("s_waitcnt vmcnt(0) lgkmcnt(0)")
    e("s_barrier")
    if stamp:
        e("s_memrealtime s[68:69]")
    e("v_lshrrev_b32 v3, 4, v0"); e("v_and_b32 v4, 15, v0")
    e("v_mul_u32_u24 v3, 272, v3"); e("v_lshl_add_u32 v3, v4, 4, v3")
    e(f"v_add_u32 v4, {2*PBUF}, v3")
    e("v_lshlrev_b32 v24, 16, v20"); e("v_and_b32 v25, 0xffff0000, v20")
    e("v_lshlrev_b32 v26, 16, v21"); e("v_and_b32 v27, 0xffff0000, v21")
    B = 32
    for k in range(4):
        r = B + k*20
        o = k*16*272
        e(f"ds_read_b128 v[{r}:{r+3}], v3 offset:{o}")
        e(f"ds_read_b128 v[{r+4}:{r+7}], v3 offset:{o+PBUF}")
        e(f"ds_read_b128 v[{r+8}:{r+11}], v4 offset:{o}")
        e(f"ds_read_b128 v[{r+12}:{r+15}], v4 offset:{o+PBUF}")
        e(f"ds_read_b128 v[{r+16}:{r+19}], v4 offset:{o+2*PBUF}")
        if k == 2: pass
    for k in range(4):
        r = B + k*20
        remaining = (3-k)*5
        e(f"s_waitcnt lgkmcnt({min(remaining,15)})")
        g = 16+k
        e(f"v_sub_f32 v28, 1.0, v{g}")
        e("v_cvt_pk_bf16_f32 v28, v28, v28"); e("v_and_b32 v28, 0xffff0000, v28")
        xs = [120, 121, 122, 123]
        e(f"v_lshlrev_b32 v{xs[0]}, 16, v{8+2*k}"); e(f"v_and_b32 v{xs[1]}, 0xffff0000, v{8+2*k}")
        e(f"v_lshlrev_b32 v{xs[2]}, 16, v{9+2*k}"); e(f"v_and_b32 v{xs[3]}, 0xffff0000, v{9+2*k}")
        for i in range(4):
            e(f"v_add_f32 v{r+i}, v{r+i}, v{r+4+i}")
            e(f"v_add_f32 v{r+12+i}, v{r+12+i}, v{r+16+i}")
            e(f"v_mul_f32 v{xs[i]}, v{xs[i]}, v{24+i}")
        for i in range(4):
            e(f"v_add_f32 v{r+i}, v{r+i}, v{r+8+i}")
        e(f"v_cvt_pk_bf16_f32 v124, v{xs[0]}, v{xs[1]}"); e(f"v_cvt_pk_bf16_f32 v125, v{xs[2]}, v{xs[3]}")
        e(f"v_cvt_pk_bf16_f32 v126, v{r}, v{r+1}"); e(f"v_cvt_pk_bf16_f32 v127, v{r+2}, v{r+3}")
        e(f"v_lshlrev_b32 v{xs[0]}, 16, v124"); e(f"v_and_b32 v{xs[1]}, 0xffff0000, v124")
        e(f"v_lshlrev_b32 v{xs[2]}, 16, v125"); e(f"v_and_b32 v{xs[3]}, 0xffff0000, v125")
        e(f"v_lshlrev_b32 v{r}, 16, v126"); e(f"v_and_b32 v{r+1}, 0xffff0000, v126")
        e(f"v_lshlrev_b32 v{r+2}, 16, v127"); e(f"v_and_b32 v{r+3}, 0xffff0000, v127")
        for i in range(4):
            e(f"v_fma_f32 v{xs[i]}, 2.0, v{r+12+i}, v{xs[i]}")
            e(f"v_mul_f32 v{r+i}, v28, v{r+i}")
        e(f"v_cvt_pk_bf16_f32 v126, v{r}, v{r+1}"); e(f"v_cvt_pk_bf16_f32 v127, v{r+2}, v{r+3}")
        e(f"v_lshlrev_b32 v{r}, 16, v126"); e(f"v_and_b32 v{r+1}, 0xffff0000, v126")
        e(f"v_lshlrev_b32 v{r+2}, 16, v127"); e(f"v_and_b32 v{r+3}, 0xffff0000, v127")
        for i in range(4):
            e(f"v_mul_f32 v{xs[i]}, v{g}, v{xs[i]}")
        for i in range(4):
            e(f"v_add_f32 v{r+i}, v{xs[i]}, v{r+i}")
        e(f"s_mov_b32 s62, {rowoff[k]*2048}")
        e(f"buffer_store_dwordx4 v[{r}:{r+3}], v23, s[56:59], s62 offen")
    if stamp:
        e("s_memrealtime s[64:65]")
        e("s_waitcnt lgkmcnt(0)")
        e("s_lshl_b32 s26, s2, 2"); e("s_add_u32 s26, s26, s12"); e("s_lshl_b32 s26, s26, 6")
        e("s_load_dwordx2 s[10:11], s[0:1], 72"); e("s_waitcnt lgkmcnt(0)")
        e(f"s_add_u32 s26, s26, 0x20000")
        e("s_add_u32 s10, s10, s26"); e("s_addc_u32 s11, s11, 0")
        e("v_mov_b32 v5, 0")
        e("v_mov_b32 v0, s60"); e("v_mov_b32 v1, s61"); e("v_mov_b32 v2, s64"); e("v_mov_b32 v3, s65")
        e("s_mov_b64 exec, 1")
        e("global_store_dwordx4 v5, v[0:3], s[10:11]")
        e("s_nop 1")
        e("v_mov_b32 v0, s66"); e("v_mov_b32 v1, s67"); e("v_mov_b32 v2, s68"); e("v_mov_b32 v3, s69")
        e("s_nop 1")
        e("global_store_dwordx4 v5, v[0:3], s[10:11] offset:16")
        e("s_nop 1")
        e("v_mov_b32 v0, s70"); e("v_mov_b32 v1, s71"); e("v_mov_b32 v2, s72"); e("v_mov_b32 v3, s73")
        e("s_nop 1")
        e("global_store_dwordx4 v5, v[0:3], s[10:11] offset:32")
        e("s_nop 1")
        e("s_sub_u32 s78, s78, s76"); e("v_mov_b32 v0, s74"); e("v_mov_b32 v1, s75"); e("v_mov_b32 v2, s78"); e("v_mov_b32 v3, 0")
        e("s_nop 1")
        e("global_store_dwordx4 v5, v[0:3], s[10:11] offset:48")
    a.label("K2_END")
    e("s_endpgm")
    acc_off = RING + NRING
    kernel_desc(a, name, acc_off + 128, acc_off)
    return a.text()
```

```python
import sys, os
sys.path.insert(0, os.path.dirname(os.path.abspath(__file__)))
import k1, k2
NAME = "gated_mix__ssm_conv_s5__dense_activation_silu__prompt"
def build(stamp=False, k1name="k1_kernel", k2name="k2_kernel", k1kw=None, k2kw=None):
    ref = open(f"cdna_kernels/{NAME}.s.ref").read().split("\n") if os.path.exists(f"cdna_kernels/{NAME}.s.ref") else []
    hdr = [l for l in ref if l.startswith(";") and "@launch" not in l and "Override launch" not in l and "grid=ceil" not in l]
    out = "\n".join(hdr) + "\n"
    out += f"; @launch kernel={k1name} grid=(256,1,1) block=(512,1,1) lds=163840\n"
    out += f"; @launch kernel={k2name} grid=(256,1,1) block=(256,1,1) lds=87040\n"
    out += '.amdgcn_target "amdgcn-amd-amdhsa--gfx950"\n'
    out += k1.gen_k1(name=k1name, stamp=stamp, **(k1kw or {}))
    out += k2.gen_k2(name=k2name, stamp=stamp, **(k2kw or {}))
    return out
if __name__ == "__main__":
    open(f"cdna_kernels/{NAME}.s", "w").write(build())
    print("written")
```
